```python
import torch

def _softmax(x, axis=-1):
    return torch.softmax(x, dim=axis)

def _gelu(x):
    return torch.nn.functional.gelu(x, approximate='tanh')

def _silu(x):
    return torch.nn.functional.silu(x)

def _sigmoid(x):
    return torch.sigmoid(x)

def _layernorm(x, axis=-1, eps=1e-05):
    m = x.mean(dim=axis, keepdim=True)
    v = x.var(dim=axis, keepdim=True, unbiased=False)
    return (x - m) / torch.sqrt(v + eps)

def _scatter_add(tgt, idx, src, axis=0):
    return tgt.clone().index_add_(axis, idx, src)

def _segment_sum(src, seg, n):
    out = torch.zeros((n,) + src.shape[1:], dtype=src.dtype)
    return out.index_add_(0, seg, src)

def _pad(x, pw):
    flat = tuple((v for pair in reversed(pw) for v in pair))
    return torch.nn.functional.pad(x, flat)
kernel_name = 'adaLN_cond__ssm_conv_h3__geglu_ffn__prompt'

def setup_inputs():

    _w = lambda a: (lambda t: t.to(torch.bfloat16) if t.is_floating_point() else t)(torch.as_tensor(a))

    def _A_setup():
        B, S, D = (1, 2048, 576)
        ks = 4
        return {'q': _w((lambda *s: torch.randn(*s, dtype=torch.bfloat16) * 0.05)(B, S, D)), 'k': _w((lambda *s: torch.randn(*s, dtype=torch.bfloat16) * 0.8)(B, S, D)), 'v': _w((lambda *s: torch.randn(*s, dtype=torch.bfloat16) * 0.8)(B, S, D)), 'shift_k': _w((lambda *s: torch.randn(*s, dtype=torch.bfloat16) * 0.8)(D, ks) * 0.5), 'ssm_k': _w((lambda *s: torch.randn(*s, dtype=torch.bfloat16) * 0.8)(D, S) * (1.0 / S ** 0.5)), 'ssm_D': _w((lambda *s: torch.randn(*s, dtype=torch.bfloat16) * 0.8)(D))}
    _A_in = _A_setup()

    def _B_setup():
        B, S, D, F = (1, 2048, 576, 4608)
        return {'x': _w((lambda *s: torch.randn(*s, dtype=torch.bfloat16) * 0.05)(B, S, D)), 'w_gate': _w((lambda *s: torch.randn(*s, dtype=torch.bfloat16) * 0.05)(D, F)), 'w_up': _w((lambda *s: torch.randn(*s, dtype=torch.bfloat16) * 0.05)(D, F)), 'w_down': _w((lambda *s: torch.randn(*s, dtype=torch.bfloat16) * 0.05)(F, D))}
    _B_in = _B_setup()
    return {'A_q': _A_in['q'], 'A_k': _A_in['k'], 'A_v': _A_in['v'], 'A_shift_k': _A_in['shift_k'], 'A_ssm_k': _A_in['ssm_k'], 'A_ssm_D': _A_in['ssm_D'], 'B_x': _B_in['x'], 'B_w_gate': _B_in['w_gate'], 'B_w_up': _B_in['w_up'], 'B_w_down': _B_in['w_down'], 'c': _w((lambda *s: torch.randn(*s, dtype=torch.bfloat16) * 0.1)(1, 576) * 8.0), 'w_mod': _w((lambda *s: torch.randn(*s, dtype=torch.bfloat16) * 0.1)(576, 6 * 576) * 576 ** (-0.5) * 8.0)}

def reference(A_q, A_k, A_v, A_shift_k, A_ssm_k, A_ssm_D, B_x, B_w_gate, B_w_up, B_w_down, c, w_mod):

    def _A_ref(q, k, v, shift_k, ssm_k, ssm_D):
        B, S, D = q.shape
        ks = shift_k.shape[-1]
        k_pad = _pad(k, ((0, 0), (ks - 1, 0), (0, 0)))
        k_shift = torch.zeros_like(k)
        for t in range(ks):
            k_shift = k_shift + k_pad[:, t:t + S, :] * shift_k[:, ks - 1 - t][None, None, :]
        kv = k_shift * v
        L = 2 * S
        kv_pad = _pad(kv, ((0, 0), (0, S), (0, 0)))
        kf_pad = _pad(ssm_k, ((0, 0), (0, S)))
        kv_f = (lambda x, axes=(-2, -1): torch.fft.rfft2(x.float(), dim=axes))(kv_pad[:, None, :, :], axes=(1, 2))
        kf_f = (lambda x, axes=(-2, -1): torch.fft.rfft2(x.float(), dim=axes))(kf_pad[:, None, :], axes=(1, 2))
        kf_f = (lambda x, *d: x.permute(*d))(kf_f, 1, 2, 0)
        y_f = kv_f * kf_f[None, :, :, :]
        y = (lambda x, s, axes=(-2, -1): torch.fft.irfft2(x, s=s, dim=axes).to(torch.bfloat16))(y_f, (1, L), axes=(1, 2))[:, 0, :S, :]
        y = y + kv * ssm_D[None, None, :]
        return q * y

    def _B_ref(x, w_gate, w_up, w_down):
        return _gelu(x @ w_gate) * (x @ w_up) @ w_down
    x = A_q
    mod = (_silu(c) @ w_mod).reshape(c.shape[0], 6, 1, -1)
    sa, ca, ga, sb, cb, gb = (mod[:, 0].clone(), mod[:, 1].clone(), mod[:, 2].clone(), mod[:, 3].clone(), mod[:, 4].clone(), mod[:, 5].clone())
    h = _layernorm(x, axis=-1) * (1 + ca) + sa
    x = x + ga * _A_ref(h, A_k, A_v, A_shift_k, A_ssm_k, A_ssm_D)
    h = _layernorm(x, axis=-1) * (1 + cb) + sb
    x = x + gb * _B_ref(h, B_w_gate, B_w_up, B_w_down)
    return x
```

```python
from gen_common import *
NAME = "kv_kernel"
GRID = 288
def gen(a):
    kernel_begin(a, NAME)
    a(f"""s_cmp_ge_u32 s2, {GRID}
s_cbranch_scc1 A1_done
s_load_dwordx4 s[4:7], s[0:1], {KA['k']}      ; k, v
s_load_dwordx2 s[24:25], s[0:1], {KA['shift']}
s_load_dwordx2 s[26:27], s[0:1], {KA['ws']}
s_and_b32 s28, s2, 31          ; rb
s_lshr_b32 s29, s2, 5          ; cg
v_and_b32 v1, 7, v0            ; pp
v_lshrrev_b32 v2, 3, v0        ; rp
s_lshl_b32 s30, s28, 6         ; 64*rb
v_lshl_add_u32 v3, v2, 1, s30  ; r0
s_lshl_b32 s31, s29, 7         ; 128*cg
v_lshl_add_u32 v4, v1, 4, s31
s_movk_i32 s32, {ROWB}
v_mul_lo_u32 v5, v3, s32
v_add_u32 v5, v5, v4           ; off(r0)
v_subrev_u32 v6, {3*ROWB}, v5  ; r0-3
v_subrev_u32 v7, {2*ROWB}, v5
v_subrev_u32 v52, {ROWB}, v5
v_add_u32 v53, {ROWB}, v5      ; r0+1
s_lshl_b32 s33, s29, 9
v_lshl_add_u32 v54, v1, 6, s33
s_mov_b32 s34, 0x05040100
s_mov_b32 s35, 0x07060302
s_waitcnt lgkmcnt(0)""")
    srd(a, 8, 4, 5, ACT_BYTES)
    srd(a, 12, 6, 7, ACT_BYTES)
    srd(a, 16, 24, 25, D * 8)
    srd(a, 20, 26, 27, ACT_BYTES, WS_KVR)
    a("""buffer_load_dwordx4 v[8:11], v6, s[8:11], 0 offen
buffer_load_dwordx4 v[12:15], v7, s[8:11], 0 offen
buffer_load_dwordx4 v[16:19], v52, s[8:11], 0 offen
buffer_load_dwordx4 v[20:23], v5, s[8:11], 0 offen
buffer_load_dwordx4 v[24:27], v53, s[8:11], 0 offen
buffer_load_dwordx4 v[36:39], v54, s[16:19], 0 offen
buffer_load_dwordx4 v[40:43], v54, s[16:19], 0 offen offset:16
buffer_load_dwordx4 v[44:47], v54, s[16:19], 0 offen offset:32
buffer_load_dwordx4 v[48:51], v54, s[16:19], 0 offen offset:48
buffer_load_dwordx4 v[28:31], v5, s[12:15], 0 offen
buffer_load_dwordx4 v[32:35], v53, s[12:15], 0 offen""")
    a("""v_sub_u32 v55, 31, v2
v_lshrrev_b32 v56, 2, v55
v_xor_b32 v56, v56, v1
v_lshlrev_b32 v56, 4, v56
v_and_b32 v55, 3, v55
v_lshl_add_u32 v56, v55, 2, v56
v_lshl_add_u32 v56, v1, 10, v56
v_lshrrev_b32 v57, 3, v2            ; ch>>3
v_xor_b32 v57, v57, v1
v_lshlrev_b32 v57, 4, v57
v_lshl_add_u32 v57, v2, 7, v57
v_xor_b32 v58, 64, v57
v_add_u32 v58, 4096, v58
s_lshl_b32 s36, s29, 18
s_lshl_b32 s37, s28, 7
s_sub_u32 s36, s36, s37
s_add_u32 s36, s36, 3968
v_lshlrev_b32 v59, 12, v2
v_lshl_add_u32 v59, v1, 4, v59
v_add_u32 v59, s36, v59
s_waitcnt vmcnt(2)""")
    for e in range(8):
        c2 = e >> 1
        sel = "s35" if e & 1 else "s34"
        w01, w23 = 36 + 2 * e, 37 + 2 * e
        km3, km2, km1, k0, kp1 = 8 + c2, 12 + c2, 16 + c2, 20 + c2, 24 + c2
        t = 60 + 4 * (e % 2)
        a(f"""v_perm_b32 v{t}, v{km3}, v{km2}, {sel}
v_perm_b32 v{t+1}, v{km1}, v{k0}, {sel}
v_perm_b32 v{t+2}, v{km2}, v{km1}, {sel}
v_perm_b32 v{t+3}, v{k0}, v{kp1}, {sel}
v_dot2_f32_bf16 v{68+e}, v{t}, v{w23}, 0
v_dot2_f32_bf16 v{76+e}, v{t+2}, v{w23}, 0
v_dot2_f32_bf16 v{68+e}, v{t+1}, v{w01}, v{68+e}
v_dot2_f32_bf16 v{76+e}, v{t+3}, v{w01}, v{76+e}""")
    a("s_waitcnt vmcnt(0)")
    for e in range(8):
        c2 = e >> 1
        t = 60 + 2 * (e % 4)
        if e & 1:
            a(f"v_and_b32 v{t}, 0xffff0000, v{28+c2}\nv_and_b32 v{t+1}, 0xffff0000, v{32+c2}")
        else:
            a(f"v_lshlrev_b32 v{t}, 16, v{28+c2}\nv_lshlrev_b32 v{t+1}, 16, v{32+c2}")
        a(f"""v_mul_f32 v{68+e}, v{68+e}, v{t}
v_mul_f32 v{76+e}, v{76+e}, v{t+1}
v_cvt_pk_bf16_f32 v{68+e}, v{76+e}, v{68+e}
ds_write_b32 v56, v{68+e} offset:{e*128}""")
    a("""s_waitcnt lgkmcnt(0)
s_barrier
ds_read_b128 v[8:11], v57
ds_read_b128 v[12:15], v58
s_mov_b32 s38, 131072
s_waitcnt lgkmcnt(1)
buffer_store_dwordx4 v[8:11], v59, s[20:23], 0 offen
s_waitcnt lgkmcnt(0)
buffer_store_dwordx4 v[12:15], v59, s[20:23], s38 offen
A1_done:
s_endpgm""")
LDS = 8192
BLOCK = 256
VGPR = 88
```

```python
from gen_common import *
NAME = "conv_kernel"
NCONV = 144
NMOD = 54
PF0 = 200
GRID = 256
HC = 4160
XOFF = 4 * HC
WREG = 21504
LDS = 4 * WREG
BLOCK = 256
VGPR = 512

def gen_conv(a):
    a(f"""s_load_dwordx4 s[4:7], s[0:1], {KA['ssm']}
s_load_dwordx2 s[26:27], s[0:1], {KA['ws']}
v_lshrrev_b32 v2, 6, v0
v_and_b32 v1, 63, v0             ; lane
v_readfirstlane_b32 s28, v2      ; w
s_lshl_b32 s29, s2, 2
s_add_u32 s29, s29, s28          ; d
s_mul_i32 s30, s28, {WREG}
s_lshl_b32 s31, s29, 12          ; d*4096
s_waitcnt lgkmcnt(0)
s_add_u32 s8, s4, s31
s_addc_u32 s9, s5, 0
s_mov_b32 s10, 4096
s_mov_b32 s11, {SRD3:#x}""")
    srd(a, 12, 26, 27, ACT_BYTES, WS_KVR)
    srd(a, 16, 6, 7, D * 2)
    srd(a, 20, 26, 27, ACT_BYTES, WS_ZT)
    a(f"""v_lshlrev_b32 v3, 4, v1          ; lane*16
s_add_u32 m0, s30, {XOFF}
s_nop 0
buffer_load_dwordx4 v3, s[12:15], s31 offen lds
buffer_load_dwordx4 v3, s[12:15], s31 offen offset:1024 lds
buffer_load_dwordx4 v3, s[12:15], s31 offen offset:2048 lds
buffer_load_dwordx4 v3, s[12:15], s31 offen offset:3072 lds""")
    a("v_subrev_u32 v4, 32, v3          ; 16*(lane-2)")
    for it in range(5):
        base = 8 + 6 * it
        if it == 0:
            a("v_add_u32 v5, 16, v4")
            a(f"buffer_load_dwordx4 v[{base}:{base+3}], v4, s[8:11], 0 offen")
            a(f"buffer_load_dwordx2 v[{base+4}:{base+5}], v5, s[8:11], 0 offen")
        else:
            a(f"v_add_u32 v5, {1024*it}, v4")
            a(f"buffer_load_dwordx4 v[{base}:{base+3}], v5, s[8:11], 0 offen")
            a(f"buffer_load_dwordx2 v[{base+4}:{base+5}], v5, s[8:11], 0 offen offset:16")
    a(f"""s_lshl_b32 s33, s29, 1
v_mov_b32 v6, s33
buffer_load_ushort v48, v6, s[16:19], 0 offen""")
    a(f"""v_mov_b32 v96, 0
v_mov_b32 v97, 0
v_mov_b32 v98, 0
v_mov_b32 v99, 0
v_add_u32 v7, s30, v3
v_cmp_gt_u32 vcc, 32, v1
s_and_saveexec_b64 s[34:35], vcc
ds_write_b128 v7, v[96:99] offset:{XOFF+4096}
s_mov_b64 exec, s[34:35]""")
    for it in range(5):
        base = 8 + 6 * it
        d = [base + i for i in range(6)]
        a(f"s_waitcnt vmcnt({2*(4-it)+1})")
        a(f"""v_alignbit_b32 v100, v{d[1]}, v{d[0]}, 16
v_alignbit_b32 v101, v{d[2]}, v{d[1]}, 16
v_alignbit_b32 v102, v{d[3]}, v{d[2]}, 16
v_alignbit_b32 v103, v{d[4]}, v{d[3]}, 16
v_mov_b32 v104, v{d[1]}
v_mov_b32 v105, v{d[2]}
v_mov_b32 v106, v{d[3]}
v_mov_b32 v107, v{d[4]}
v_alignbit_b32 v108, v{d[2]}, v{d[1]}, 16
v_alignbit_b32 v109, v{d[3]}, v{d[2]}, 16
v_alignbit_b32 v110, v{d[4]}, v{d[3]}, 16
v_alignbit_b32 v111, v{d[5]}, v{d[4]}, 16""")
        if it == 4:
            a("v_cmp_gt_u32 vcc, 2, v1\ns_and_saveexec_b64 s[34:35], vcc")
        a(f"""ds_write_b128 v7, v[{d[0]}:{d[3]}] offset:{1024*it}
ds_write_b128 v7, v[100:103] offset:{HC+1024*it}
ds_write_b128 v7, v[104:107] offset:{2*HC+1024*it}
ds_write_b128 v7, v[108:111] offset:{3*HC+1024*it}""")
        if it == 4:
            a("s_mov_b64 exec, s[34:35]")
    a(f"""v_and_b32 v50, 15, v1            ; m / n
v_lshrrev_b32 v51, 4, v1         ; kg / g
v_add_u32 v52, 1, v50            ; m+1
v_and_b32 v53, 3, v52            ; r
v_mul_u32_u24 v54, {HC}, v53
v_sub_u32 v52, v52, v53
v_lshl_add_u32 v54, v52, 1, v54
v_lshl_add_u32 v54, v51, 4, v54
v_add_u32 v54, s30, v54          ; vHA
v_lshlrev_b32 v55, 5, v50        ; 32 n
v_lshlrev_b32 v56, 4, v51
v_sub_u32 v56, v56, v55
v_add_u32 v56, {XOFF + 4064 - 3584}, v56
v_add_u32 v56, s30, v56          ; vXB
v_lshlrev_b32 v57, 3, v51
v_add_u32 v57, v57, v55          ; 32n + 8g
v_sub_u32 v58, {XOFF + 4088 - 3584}, v57
v_add_u32 v58, s30, v58
v_add_u32 v57, s31, v57
s_waitcnt vmcnt(0) lgkmcnt(0)""")
    def rdA(t):
        b = 32 + 4 * (t % 4)
        return [f"ds_read_b64 v[{b}:{b+1}], v54 offset:{64*t}", f"ds_read_b64 v[{b+2}:{b+3}], v54 offset:{64*t+8}"]
    def rdF(tau):
        r = 4 * (tau + 56)
        return f"ds_read_b128 a[{r}:{r+3}], v56 offset:{64*(tau+56)}"
    ops = []
    issued = []
    done_upto = [-1]
    def issue(txt):
        issued.append(len(issued)); a(txt)
        assert len(issued) - 1 - done_upto[0] <= 15, "too many outstanding"
        return issued[-1]
    idA = {}; idF = {}
    def wait_for(ids):
        m = max(ids)
        if m <= done_upto[0]: return
        n = len(issued) - 1 - m
        assert n <= 15
        a(f"s_waitcnt lgkmcnt({n})")
        done_upto[0] = m
    for x in rdA(0): idA[0] = issue(x)
    for q in range(8): idF[-8 * q] = issue(rdF(-8 * q))
    for x in rdA(1): idA[1] = issue(x)
    for t in range(64):
        qs = list(range(t // 8, 8))
        for n, q in enumerate(qs):
            tau = t - 8 * q
            wait_for([idA[t], idF[tau]])
            b = 32 + 4 * (t % 4); r = 4 * (tau + 56); ac = 64 + 4 * q
            c = "0" if t == 0 else f"v[{ac}:{ac+3}]"
            a(f"v_mfma_f32_16x16x32_bf16 v[{ac}:{ac+3}], v[{b}:{b+3}], a[{r}:{r+3}], {c}")
            if t + 1 < 8:
                idF[tau + 1] = issue(rdF(tau + 1))
            if n == 0 and t + 2 < 64:
                for x in rdA(t + 2): idA[t + 2] = issue(x)
    for q in range(8):
        a(f"ds_read_b64 v[{8+2*q}:{9+2*q}], v58 offset:{512*(7-q)}")
    a("v_lshlrev_b32 v48, 16, v48\ns_nop 7")
    for q in range(8):
        ac = 64 + 4 * q
        x0, x1 = 8 + 2 * q, 9 + 2 * q
        a(f"s_waitcnt lgkmcnt({7-q})")
        a(f"""v_and_b32 v100, 0xffff0000, v{x1}
v_lshlrev_b32 v101, 16, v{x1}
v_and_b32 v102, 0xffff0000, v{x0}
v_lshlrev_b32 v103, 16, v{x0}
v_fma_f32 v100, v100, v48, v{ac}
v_fma_f32 v101, v101, v48, v{ac+1}
v_fma_f32 v102, v102, v48, v{ac+2}
v_fma_f32 v103, v103, v48, v{ac+3}
v_cvt_pk_bf16_f32 v{104+2*(q%2)}, v100, v101
v_cvt_pk_bf16_f32 v{105+2*(q%2)}, v102, v103
buffer_store_dwordx2 v[{104+2*(q%2)}:{105+2*(q%2)}], v57, s[20:23], 0 offen offset:{512*q}""")
    a("s_endpgm")

def gen_mod(a):
    a(f"""s_load_dwordx4 s[4:7], s[0:1], {KA['c']}      ; c, w_mod
s_load_dwordx2 s[26:27], s[0:1], {KA['ws']}
s_sub_u32 s28, s2, {NCONV}
v_and_b32 v1, 7, v0              ; pp
v_lshrrev_b32 v2, 3, v0          ; rg 0..31
s_lshl_b32 s29, s28, 7
v_mul_u32_u24 v3, 6912, v2
v_lshl_add_u32 v3, v1, 4, v3
v_add_u32 v3, s29, v3
v_lshlrev_b32 v4, 1, v2          ; c offset
s_waitcnt lgkmcnt(0)""")
    srd(a, 8, 4, 5, D * 2)
    srd(a, 12, 6, 7, D * 3456 * 2)
    srd(a, 16, 26, 27, 3456 * 4, WS_MOD)
    for i in range(18):
        a(f"buffer_load_ushort v{8+i}, v4, s[8:11], 0 offen offset:{64*i}")
    a("s_mov_b32 s30, 0")
    for i in range(18):
        a(f"buffer_load_dwordx4 v[{32+4*i}:{35+4*i}], v3, s[12:15], s30 offen")
        if i < 17: a(f"s_add_u32 s30, s30, {32*6912}")
    a("s_waitcnt vmcnt(18)")
    for i in range(18):
        a(f"v_lshlrev_b32 v{8+i}, 16, v{8+i}")
    for i in range(18):
        a(f"v_mul_f32 v{110+i}, 0xbfb8aa3b, v{8+i}")
    for i in range(18):
        a(f"v_exp_f32 v{110+i}, v{110+i}")
    for i in range(18):
        a(f"v_add_f32 v{110+i}, 1.0, v{110+i}")
    for i in range(18):
        a(f"v_rcp_f32 v{110+i}, v{110+i}")
    a("s_nop 0")
    for i in range(18):
        a(f"v_mul_f32 v{8+i}, v{8+i}, v{110+i}")
    for i in range(18):
        a(f"v_cvt_pk_bf16_f32 v{8+i}, v{8+i}, v{8+i}")
    for i in range(18):
        a(f"v_lshlrev_b32 v{8+i}, 16, v{8+i}")
    for e in range(8):
        a(f"v_mov_b32 v{130+e}, 0")
    for i in range(18):
        a(f"s_waitcnt vmcnt({17-i})")
        for c2 in range(4):
            a(f"""v_lshlrev_b32 v140, 16, v{32+4*i+c2}
v_and_b32 v141, 0xffff0000, v{32+4*i+c2}
v_fmac_f32 v{130+2*c2}, v140, v{8+i}
v_fmac_f32 v{131+2*c2}, v141, v{8+i}""")
    a("""v_lshlrev_b32 v5, 5, v0
ds_write_b128 v5, v[130:133]
ds_write_b128 v5, v[134:137] offset:16
s_waitcnt lgkmcnt(0)
s_barrier
v_cmp_gt_u32 vcc, 64, v0
s_and_saveexec_b64 s[34:35], vcc
s_cbranch_execz A2_mod_done
v_lshlrev_b32 v5, 2, v0""")
    for rg in range(32):
        a(f"ds_read_b32 v{32+rg}, v5 offset:{rg*256}")
        if rg == 14: a("s_waitcnt lgkmcnt(0)")
        if rg == 29: a("s_waitcnt lgkmcnt(0)")
    a("s_waitcnt lgkmcnt(0)")
    for st in (16, 8, 4, 2, 1):
        for i in range(st):
            a(f"v_add_f32 v{32+i}, v{32+i}, v{32+i+st}")
    a(f"""v_cvt_pk_bf16_f32 v32, v32, v32
v_lshlrev_b32 v32, 16, v32
s_lshl_b32 s29, s28, 8
v_add_u32 v5, s29, v5
buffer_store_dword v32, v5, s[16:19], 0 offen
A2_mod_done:
s_endpgm""")

def gen_pref(a):
    a(f"""s_load_dwordx4 s[4:7], s[0:1], {KA['wg']}
s_load_dwordx2 s[24:25], s[0:1], {KA['wd']}
s_and_b32 s28, s2, 7             ; j
s_sub_u32 s29, s2, {PF0}
s_lshr_b32 s29, s29, 3           ; part 0..6
s_lshl_b32 s29, s29, 8
v_add_u32 v1, s29, v0            ; t 0..1791
s_waitcnt lgkmcnt(0)""")
    srd(a, 8, 4, 5, D * F * 2)
    srd(a, 12, 6, 7, D * F * 2)
    srd(a, 16, 24, 25, D * F * 2)
    a(f"s_mul_i32 s30, s28, 1152\ns_mov_b32 s31, {(2**32 + 8)//9}\ns_movk_i32 s32, 9216")
    for i in range(3):
        a(f"""v_add_u32 v2, {1792*i}, v1
v_mul_hi_u32 v3, v2, s31          ; row
v_mul_u32_u24 v4, 9, v3
v_sub_u32 v4, v2, v4              ; c
v_mul_lo_u32 v3, v3, s32
v_lshl_add_u32 v3, v4, 7, v3
v_add_u32 v3, s30, v3
v_cmp_gt_u32 vcc, 5184, v2
s_nop 1
v_cndmask_b32 v{8+i}, -1, v3, vcc""")
    for i in range(3):
        a(f"buffer_load_dword v{20+i}, v{8+i}, s[8:11], 0 offen")
        a(f"buffer_load_dword v{24+i}, v{8+i}, s[12:15], 0 offen")
    a(f"s_mul_i32 s30, s28, {576*1152}")
    for i in range(3):
        a(f"""v_add_u32 v2, {1792*i}, v1
v_lshlrev_b32 v3, 7, v2
v_add_u32 v3, s30, v3
v_cmp_gt_u32 vcc, 5184, v2
s_nop 1
v_cndmask_b32 v{12+i}, -1, v3, vcc
buffer_load_dword v{28+i}, v{12+i}, s[16:19], 0 offen""")
    a("s_waitcnt vmcnt(0)\ns_endpgm")

def gen(a):
    kernel_begin(a, NAME)
    a(f"""s_cmp_lt_u32 s2, {NCONV}
s_cbranch_scc1 A2_conv
s_cmp_lt_u32 s2, {NCONV+NMOD}
s_cbranch_scc1 A2_mod
s_cmp_lt_u32 s2, {PF0}
s_cbranch_scc1 A2_exit
s_cmp_lt_u32 s2, {GRID}
s_cbranch_scc1 A2_pref
A2_exit:
s_endpgm
A2_pref:""")
    gen_pref(a)
    a("A2_mod:")
    gen_mod(a)
    a("A2_conv:")
    gen_conv(a)
```

```python
from gen_common import *
NAME = "row_kernel"
GRID = 256
BLOCK = 576
ZOFF = 0
RED1 = 9216
RED2 = 9216 + 1024
LDS = 9216 + 2048
VGPR = 128
EPS = 1e-5
import struct
def f32(x): return "0x%08x" % struct.unpack("<I", struct.pack("<f", x))[0]

def lane_reduce(a, r, t):
    for reg, tmp in ((r, t), (r + 1, t + 1)):
        pass
    a(f"""s_nop 1
v_mov_b32_dpp v{t}, v{r} row_ror:8 row_mask:0xf bank_mask:0xf
v_mov_b32_dpp v{t+1}, v{r+1} row_ror:8 row_mask:0xf bank_mask:0xf
v_add_f32 v{r}, v{r}, v{t}
v_add_f32 v{r+1}, v{r+1}, v{t+1}
v_mov_b32 v{t}, v{r}
v_mov_b32 v{t+1}, v{r+1}
s_nop 1
v_permlane16_swap_b32 v{r}, v{t}
v_permlane16_swap_b32 v{r+1}, v{t+1}
v_add_f32 v{r}, v{r}, v{t}
v_add_f32 v{r+1}, v{r+1}, v{t+1}
v_mov_b32 v{t}, v{r}
v_mov_b32 v{t+1}, v{r+1}
s_nop 1
v_permlane32_swap_b32 v{r}, v{t}
v_permlane32_swap_b32 v{r+1}, v{t+1}
v_add_f32 v{r}, v{r}, v{t}
v_add_f32 v{r+1}, v{r+1}, v{t+1}""")

def rnd(a, r, n=1):
    a(f"v_cvt_pk_bf16_f32 v{r}, v{r}, v{r}\nv_lshlrev_b32 v{r}, 16, v{r}")

def stats(a, red_base_reg, off, m, rs, tmp):
    for w in range(9):
        a(f"ds_read_b64 v[{tmp+2*w}:{tmp+2*w+1}], v{red_base_reg} offset:{off + 64*w}")
    a("s_waitcnt lgkmcnt(0)")
    for st in ((0, 1), (2, 3), (4, 5), (6, 7), (0, 2), (4, 6), (0, 4), (0, 8)):
        x, y = st
        a(f"v_add_f32 v{tmp+2*x}, v{tmp+2*x}, v{tmp+2*y}\nv_add_f32 v{tmp+2*x+1}, v{tmp+2*x+1}, v{tmp+2*y+1}")
    a(f"""v_mul_f32 v{m}, {f32(1.0/576)}, v{tmp}          ; mean
v_mul_f32 v{rs}, {f32(1.0/576)}, v{tmp+1}       ; E[x^2]
v_fma_f32 v{rs}, -v{m}, v{m}, v{rs}             ; var
v_max_f32 v{rs}, 0, v{rs}""")
    rnd(a, m); rnd(a, rs)
    a(f"v_add_f32 v{rs}, {f32(EPS)}, v{rs}")
    rnd(a, rs)
    a(f"v_sqrt_f32 v{rs}, v{rs}\ns_nop 0")
    rnd(a, rs)
    a(f"v_rcp_f32 v{rs}, v{rs}\ns_nop 0")

def gen(a):
    kernel_begin(a, NAME)
    a(f"""s_cmp_ge_u32 s2, {GRID}
s_cbranch_scc1 C_done
s_load_dwordx2 s[4:5], s[0:1], {KA['q']}
s_load_dwordx2 s[26:27], s[0:1], {KA['ws']}
s_lshr_b32 s28, s2, 6
s_lshl_b32 s28, s28, 3
s_and_b32 s29, s2, 7
s_add_u32 s28, s28, s29          ; mt
s_lshr_b32 s29, s2, 3
s_and_b32 s29, s29, 7            ; i
s_lshl_b32 s30, s28, 6
s_lshl_b32 s31, s29, 3
s_add_u32 s30, s30, s31          ; s0
v_lshrrev_b32 v2, 6, v0          ; w
v_and_b32 v1, 63, v0             ; lane
v_lshrrev_b32 v3, 3, v1          ; pp
v_and_b32 v4, 7, v1              ; tau
v_lshlrev_b32 v5, 3, v3
v_lshl_add_u32 v5, v2, 6, v5     ; c0 = 64w + 8pp
v_add_u32 v6, s30, v4            ; token T
s_movk_i32 s32, {ROWB}
v_mul_lo_u32 v7, v6, s32
v_lshl_add_u32 v7, v5, 1, v7     ; x offset
v_lshlrev_b32 v8, 12, v0         ; tid*4096
s_lshl_b32 s33, s30, 1
v_add_u32 v8, s33, v8
v_lshlrev_b32 v9, 2, v5
s_waitcnt lgkmcnt(0)""")
    srd(a, 8, 4, 5, ACT_BYTES)
    srd(a, 12, 26, 27, ACT_BYTES, WS_ZT)
    srd(a, 16, 26, 27, 3456 * 4, WS_MOD)
    srd(a, 20, 26, 27, ACT_BYTES, WS_H2F)
    srd(a, 36, 26, 27, ACT_BYTES, WS_X1F)
    a("""buffer_load_dwordx4 v[12:15], v8, s[12:15], 0 offen
buffer_load_dwordx4 v[16:19], v7, s[8:11], 0 offen""")
    for k in range(5):
        a(f"s_movk_i32 s34, {k*D*4}")
        a(f"buffer_load_dwordx4 v[{64+8*k}:{67+8*k}], v9, s[16:19], s34 offen")
        a(f"buffer_load_dwordx4 v[{68+8*k}:{71+8*k}], v9, s[16:19], s34 offen offset:16")
    a(f"""v_lshlrev_b32 v10, 4, v0
v_lshrrev_b32 v20, 4, v1
v_bfe_u32 v21, v1, 1, 1
v_lshl_add_u32 v20, v20, 1, v21
v_lshlrev_b32 v20, 3, v20
v_bfe_u32 v21, v1, 2, 2
v_add_u32 v20, v20, v21
v_lshl_add_u32 v20, v2, 6, v20
v_lshlrev_b32 v20, 4, v20
v_and_b32 v21, 1, v1
v_lshl_add_u32 v11, v21, 3, v20
v_lshlrev_b32 v22, 3, v4
v_lshl_add_u32 v23, v2, 6, v22
s_lshr_b32 s35, s29, 2            ; tg
s_lshl_b32 s40, s28, 1
s_add_u32 s40, s40, s35           ; mt*2+tg
s_mul_i32 s41, s40, 36*1024
s_and_b32 s42, s29, 3
s_lshl_b32 s42, s42, 3            ; 8*(i&3)
v_add_u32 v24, s42, v4            ; tl
v_lshrrev_b32 v25, 1, v3          ; pp>>1
v_lshl_add_u32 v25, v2, 2, v25    ; kstep
v_lshlrev_b32 v25, 10, v25
v_and_b32 v26, 1, v3              ; hf
v_lshl_add_u32 v26, v26, 5, v24
v_lshl_add_u32 v25, v26, 4, v25
v_add_u32 v25, s41, v25           ; h2f offset
s_mul_i32 s43, s28, 18*4096
s_lshl_b32 s44, s35, 11
s_add_u32 s43, s43, s44
v_lshrrev_b32 v26, 2, v3
v_lshl_add_u32 v26, v2, 1, v26    ; b
v_lshlrev_b32 v26, 12, v26
v_bfe_u32 v27, v3, 1, 1           ; q>>1
v_lshl_add_u32 v26, v27, 10, v26
v_lshl_add_u32 v26, v24, 4, v26
v_and_b32 v27, 1, v3              ; q&1
v_lshl_add_u32 v26, v27, 3, v26
v_add_u32 v26, s43, v26
s_waitcnt vmcnt(11)
ds_write_b128 v10, v[12:15]
s_waitcnt vmcnt(10)""")
    for c2 in range(4):
        a(f"v_lshlrev_b32 v{32+2*c2}, 16, v{16+c2}\nv_and_b32 v{33+2*c2}, 0xffff0000, v{16+c2}")
    a("v_add_f32 v28, v32, v33\nv_mul_f32 v29, v32, v32\nv_fmac_f32 v29, v33, v33")
    for e in range(2, 8):
        a(f"v_add_f32 v28, v28, v{32+e}\nv_fmac_f32 v29, v{32+e}, v{32+e}")
    lane_reduce(a, 28, 30)
    a(f"""v_cmp_gt_u32 vcc, 8, v1
s_and_saveexec_b64 s[46:47], vcc
ds_write_b64 v23, v[28:29] offset:{RED1}
s_mov_b64 exec, s[46:47]
s_waitcnt lgkmcnt(0)
s_barrier
ds_read_b64_tr_b16 v[12:13], v11
ds_read_b64_tr_b16 v[14:15], v11 offset:64""")
    stats(a, 22, RED1, 60, 61, 40)
    a("s_waitcnt vmcnt(0)")
    for c2 in range(4):
        a(f"v_lshlrev_b32 v{40+2*c2}, 16, v{12+c2}\nv_and_b32 v{41+2*c2}, 0xffff0000, v{12+c2}")
    for e in range(8):
        sa, ca, ga = 64 + e, 72 + e, 80 + e
        a(f"""v_add_f32 v{ca}, 1.0, v{ca}
v_sub_f32 v{48+e}, v{32+e}, v60""")
    for e in range(0, 8, 2):
        ca = 72 + e
        a(f"v_cvt_pk_bf16_f32 v{ca}, v{ca}, v{ca+1}\nv_and_b32 v{ca+1}, 0xffff0000, v{ca}\nv_lshlrev_b32 v{ca}, 16, v{ca}")
    for e in range(8):
        sa, ca, ga = 64 + e, 72 + e, 80 + e
        a(f"""v_mul_f32 v{48+e}, v{48+e}, v61
v_fma_f32 v{48+e}, v{48+e}, v{ca}, v{sa}
v_mul_f32 v{48+e}, v{48+e}, v{40+e}
v_fma_f32 v{48+e}, v{48+e}, v{ga}, v{32+e}""")
    for c2 in range(4):
        a(f"v_cvt_pk_bf16_f32 v{16+c2}, v{48+2*c2}, v{49+2*c2}")
    for c2 in range(4):
        a(f"v_lshlrev_b32 v{32+2*c2}, 16, v{16+c2}\nv_and_b32 v{33+2*c2}, 0xffff0000, v{16+c2}")
    a("v_add_f32 v28, v32, v33\nv_mul_f32 v29, v32, v32\nv_fmac_f32 v29, v33, v33")
    for e in range(2, 8):
        a(f"v_add_f32 v28, v28, v{32+e}\nv_fmac_f32 v29, v{32+e}, v{32+e}")
    lane_reduce(a, 28, 30)
    a(f"""v_cmp_gt_u32 vcc, 8, v1
s_and_saveexec_b64 s[46:47], vcc
ds_write_b64 v23, v[28:29] offset:{RED2}
s_mov_b64 exec, s[46:47]
buffer_store_dwordx2 v[16:17], v26, s[36:39], 0 offen
buffer_store_dwordx2 v[18:19], v26, s[36:39], 0 offen offset:512
s_waitcnt lgkmcnt(0)
s_barrier""")
    stats(a, 22, RED2, 60, 61, 40)
    for e in range(8):
        cb = 96 + e
        a(f"v_add_f32 v{cb}, 1.0, v{cb}\nv_sub_f32 v{48+e}, v{32+e}, v60")
    for e in range(0, 8, 2):
        cb = 96 + e
        a(f"v_cvt_pk_bf16_f32 v{cb}, v{cb}, v{cb+1}\nv_and_b32 v{cb+1}, 0xffff0000, v{cb}\nv_lshlrev_b32 v{cb}, 16, v{cb}")
    for e in range(8):
        sb, cb = 88 + e, 96 + e
        a(f"v_mul_f32 v{48+e}, v{48+e}, v61\nv_fma_f32 v{48+e}, v{48+e}, v{cb}, v{sb}")
    for c2 in range(4):
        a(f"v_cvt_pk_bf16_f32 v{12+c2}, v{48+2*c2}, v{49+2*c2}")
    a("""buffer_store_dwordx4 v[12:15], v25, s[20:23], 0 offen
C_done:
s_endpgm""")
```

```python
S = 2048; D = 576; F = 4608
ROWB = D * 2
ACT_BYTES = S * D * 2
KA = dict(q=0, k=8, v=16, shift=24, ssm=32, ssmD=40, bx=48, wg=56, wu=64, wd=72, c=80, wmod=88, out=96, dbg=104, ws=112)
WS_KVR  = 0x000000
WS_ZT   = 0x240000
WS_MOD  = 0x480000
WS_H2F  = 0x490000
WS_X1F  = 0x6D0000
WS_PART = 0xA00000
SRD3 = 0x00020000

class Asm:
    def __init__(self):
        self.lines = []
        self.uid = 0
    def __call__(self, s=""):
        for l in s.split("\n"):
            self.lines.append(l if (l.endswith(":") or l.startswith(".") or l.startswith(";")) else ("  " + l.strip() if l.strip() else ""))
    def label(self, base="L"):
        self.uid += 1
        return f"{base}_{self.uid}"
    def text(self):
        return "\n".join(self.lines) + "\n"

def kernel_begin(a, name):
    a(f".text\n.globl {name}\n.p2align 8\n.type {name},@function\n{name}:")

def kernel_desc(a, name, vgpr, sgpr=102, accum=None):
    if accum is None:
        accum = min(256, (vgpr + 3) // 4 * 4)
    a.lines.append(f""".section .rodata,"a"
.p2align 6
.amdhsa_kernel {name}
  .amdhsa_next_free_vgpr {vgpr}
  .amdhsa_next_free_sgpr {sgpr}
  .amdhsa_accum_offset {accum}
  .amdhsa_group_segment_fixed_size 0
  .amdhsa_kernarg_size 120
  .amdhsa_user_sgpr_count 2
  .amdhsa_user_sgpr_kernarg_segment_ptr 1
  .amdhsa_system_sgpr_workgroup_id_x 1
  .amdhsa_float_denorm_mode_32 3
  .amdhsa_float_denorm_mode_16_64 3
.end_amdhsa_kernel""")

def srd(a, d, lo, hi, nbytes, off=0):
    if off:
        a(f"s_add_u32 s{d}, s{lo}, {off}")
        a(f"s_addc_u32 s{d+1}, s{hi}, 0")
    else:
        a(f"s_mov_b32 s{d}, s{lo}")
        a(f"s_mov_b32 s{d+1}, s{hi}")
    a(f"s_mov_b32 s{d+2}, {nbytes}")
    a(f"s_mov_b32 s{d+3}, {SRD3:#x}")
```

```python
from gen_common import *
import struct
NAME = "ffn_kernel"
GRID = 256
BLOCK = 256
LDS = 163840
SLOT = 24576
ACT = 4 * SLOT
VGPR = 512
def f32(x): return "0x%08x" % struct.unpack("<I", struct.pack("<f", x))[0]
C1 = -2.0 * 1.4426950408889634 * 0.7978845608028654
C2 = C1 * 0.044715
STORE_FLAGS = "sc1"

V_DMA = 2
V_A1 = 8
V_A2 = 10
V_A3 = 12
V_ACTB, V_ACTW, V_ACTR, V_C2, V_ST = 14, 15, 16, 17, 18
V_X, V_Y = 20, 24
V_AR = 32
V_PK = 56
V_ACC = 64
V_EP = 128
S_OFF, S_WB1, S_WB2, S_ACTG, S_PST, S_LOOP, S_OFF2 = 40, 41, 42, 43, 44, 45, 46

def breg(beta):
    return f"a[{4*beta}:{4*beta+3}]" if beta < 64 else f"v[{224+4*(beta-64)}:{224+4*(beta-64)+3}]"
def acc(p, tg):
    b = V_ACC + 32 * p + 16 * tg
    return b

class Sim:
    def __init__(self):
        self.out = []
        self.nvm = 0; self.vm_done = 0
        self.nlg = 0; self.lg_done = 0
    def e(self, t): self.out.append(t)
    def vm(self, t):
        self.out.append(t); self.nvm += 1
        assert self.nvm - self.vm_done <= 63
        return self.nvm
    def lg(self, t):
        self.out.append(t); self.nlg += 1
        assert self.nlg - self.lg_done <= 15, "lgkm overflow"
        return self.nlg
    def wait_vm(self, tok):
        if tok <= self.vm_done: return
        self.out.append(f"s_waitcnt vmcnt({self.nvm - tok})"); self.vm_done = tok
    def wait_lg(self, tok):
        if tok <= self.lg_done: return
        self.out.append(f"s_waitcnt lgkmcnt({self.nlg - tok})"); self.lg_done = tok
    def mark(self, name): self.out.append(f";@@{name}")

def geglu_stream(p):
    st = []
    for tg in range(2):
        ab = acc(p, tg)
        for half in range(2):
            g = [ab + 4 * half + i for i in range(4)]
            u = [ab + 8 + 4 * half + i for i in range(4)]
            x = [V_X + i for i in range(4)]; y = [V_Y + i for i in range(4)]
            for i in range(4): st.append((f"v_mul_f32 v{x[i]}, v{g[i]}, v{g[i]}", 1, 'v'))
            for i in range(4): st.append((f"v_fmaak_f32 v{x[i]}, v{V_C2}, v{x[i]}, {f32(C1)}", 1, 'v'))
            for i in range(4): st.append((f"v_mul_f32 v{x[i]}, v{g[i]}, v{x[i]}", 1, 'v'))
            for i in range(4): st.append((f"v_exp_f32 v{x[i]}, v{x[i]}", 2, 'v'))
            for i in range(4): st.append((f"v_mul_f32 v{y[i]}, v{g[i]}, v{u[i]}", 1, 'v'))
            for i in range(4): st.append((f"v_add_f32 v{x[i]}, 1.0, v{x[i]}", 1, 'v'))
            for i in range(4): st.append((f"v_rcp_f32 v{x[i]}, v{x[i]}", 2, 'v'))
            st.append(("s_nop 0", 1, 'v')) if False else None
            for i in range(4): st.append((f"v_mul_f32 v{y[i]}, v{y[i]}, v{x[i]}", 1, 'v'))
            pk = V_PK + 4 * tg + 2 * half
            st.append((f"v_cvt_pk_bf16_f32 v{pk}, v{y[0]}, v{y[1]}", 1, 'v'))
            st.append((f"v_cvt_pk_bf16_f32 v{pk+1}, v{y[2]}, v{y[3]}", 1, 'v'))
        st.append((f"ds_write_b128 v{V_ACTW}, v[{V_PK+4*tg}:{V_PK+4*tg+3}] offset:{1024*tg}", 1, 'lg'))
    return st

def epi_stream(p, ntiles, sreg_off):
    st = []
    for tg in range(ntiles):
        ab = acc(p, tg)
        eb = V_EP + 8 * tg
        for i in range(8):
            st.append((f"v_cvt_pk_bf16_f32 v{eb+i}, v{ab+2*i}, v{ab+2*i+1}", 1, 'v'))
        for h in range(2):
            st.append((f"buffer_store_dwordx4 v[{eb+4*h}:{eb+4*h+3}], v{V_ST}, s[16:19], s{sreg_off} offen offset:{2048*tg+1024*h} {STORE_FLAGS}", 1, 'vm'))
    return st

def build():
    S_ = Sim()
    e = S_.e
    stages = []
    for g in range(9):
        for q in range(6): stages.append(dict(kind='g1', g=g, q=q))
    for bg in range(4):
        for q in range(6): stages.append(dict(kind='g2', bg=bg, q=q))
    for q in range(3): stages.append(dict(kind='g3', q=q))
    NS = len(stages)
    ksteps = []
    for si, st in enumerate(stages):
        n = 12 if st['kind'] == 'g3' else 6
        st['k0'] = len(ksteps)
        for kl in range(n): ksteps.append((si, kl))
    dma_tok = {}
    rd_tok = {}
    def a_reads(n):
        si, kl = ksteps[n]; st = stages[si]; slot = si % 4
        buf = V_AR + 4 * (n % 6)
        hi = slot >= 2
        so = (slot & 1) * SLOT
        if st['kind'] == 'g1': va = V_A1 + hi; o1 = so + kl * 2048; o2 = o1 + 512
        elif st['kind'] == 'g2': va = V_A2 + hi; o1 = so + kl * 4096; o2 = o1 + 2048
        else: va = V_A3 + hi; o1 = so + kl * 2048; o2 = o1 + 1024
        S_.lg(f"ds_read_b64_tr_b16 v[{buf}:{buf+1}], v{va} offset:{o1}")
        rd_tok[n] = S_.lg(f"ds_read_b64_tr_b16 v[{buf+2}:{buf+3}], v{va} offset:{o2}")
    def dma_items(si):
        st = stages[si]; slot = si % 4
        items = []
        srd_ = "s[8:11]" if st['kind'] == 'g1' else "s[12:15]"
        wb = S_WB1 if st['kind'] == 'g1' else S_WB2
        so = S_OFF if st['kind'] == 'g1' else S_OFF2
        def mk(i):
            def f():
                if i % 4 == 0:
                    e(f"s_add_u32 m0, s{wb}, {slot*SLOT + 1024*i}")
                    if i == 0:
                        pre = st.get('pre_dma')
                        if pre:
                            for t in pre: e(t)
                        else: e("s_nop 0")
                    else:
                        e("s_nop 0")
                tok = S_.vm(f"buffer_load_dwordx4 v{V_DMA+i}, {srd_}, s{so} offen offset:{1024*(i%4)} lds")
                if i == 5:
                    dma_tok[si] = tok
                    if st['kind'] == 'g1':
                        d = 96 * 9216 if st['q'] < 5 else -(480 * 9216) + 128
                        e(f"s_add_u32 s{so}, s{so}, {d & 0xffffffff:#x}")
                    elif st['kind'] == 'g2':
                        if st['q'] < 5: d = 96 * 1152
                        elif st['bg'] < 3: d = -(480 * 1152) + 256
                        else: d = None
                        if d is not None: e(f"s_add_u32 s{so}, s{so}, {d & 0xffffffff:#x}")
                    else:
                        e(f"s_add_u32 s{so}, s{so}, {192*1152}")
            return f
        return [mk(i) for i in range(6)]
    g2_switch = []
    for i in range(6):
        g2_switch.append(f"v_add_u32 v{V_DMA+i}, {i*4*1152 - (i%4)*1024}, v28")
    g3_switch = []
    for i in range(6):
        g3_switch.append(f"v_add_u32 v{V_DMA+i}, {i*8*1152 - (i%4)*1024}, v29")
    g3_switch.append(f"s_mov_b32 s{S_OFF2}, s47")
    first_g2 = 54; first_g3 = 54 + 24
    stages[first_g2]['pre_dma'] = g2_switch
    stages[first_g3]['pre_dma'] = g3_switch

    S_.mark("PRO_DMA_H2F")
    h2_tok = None
    for i in range(18):
        dst = (ACT + 4096 * i) if i < 16 else (3 * SLOT + 4096 * (i - 16))
        e(f"s_add_u32 m0, s48, {dst}")
        e(f"s_add_u32 s50, s49, {4096*i}")
        h2_tok = S_.vm(f"buffer_load_dwordx4 v{V_ST}, s[20:23], s50 offen lds")
    for si in range(3):
        for f in dma_items(si): f()
    S_.wait_vm(h2_tok)
    e("s_barrier")
    toks = []
    for kap in range(36):
        for tg in range(2):
            phi = tg * 36 + kap
            beta = 2 * kap + tg
            if phi < 64: addr = f"v{V_ACTR} offset:{phi*1024}"
            else: addr = f"v30 offset:{(phi-64)*1024}"
            if S_.nlg - S_.lg_done >= 15: S_.wait_lg(S_.nlg - 7)
            toks.append(S_.lg(f"ds_read_b128 {breg(beta)}, {addr}"))
    S_.wait_lg(toks[-1])
    S_.wait_vm(dma_tok[0])
    e("s_barrier")
    a_reads(0); a_reads(1)
    nxt_read = 2
    def run_stage(si, queue, per_slot, extra_slot=None):
        nonlocal nxt_read
        st = stages[si]
        kind = st['kind']
        nk = 12 if kind == 'g3' else 6
        mf_per = 1 if kind == 'g3' else 2
        dist = 4 if kind == 'g3' else 2
        slot_i = 0
        dmas = dma_items(si + 3) if si + 3 < NS else []
        budget = 0.0
        for kl in range(nk):
            n = st['k0'] + kl
            for t in range(mf_per):
                if t == 0: S_.wait_lg(rd_tok[n])
                buf = V_AR + 4 * (n % 6)
                if kind == 'g1':
                    p = st['g'] & 1; kap = 6 * st['q'] + kl; tg = t
                    d = acc(p, tg); first = (kap == 0); B = breg(2 * kap + tg)
                elif kind == 'g2':
                    p = 1 - (st['bg'] & 1); kap = 6 * st['q'] + kl; tg = t
                    d = acc(p, tg); first = (kap == 0); B = breg(2 * kap + tg)
                else:
                    p = 1; kap = 12 * st['q'] + kl
                    d = acc(p, 0); first = (kap == 0); B = None
                c = "0" if first else f"v[{d}:{d+15}]"
                if kind == 'g3':
                    e(f"v_mfma_f32_32x32x16_bf16 v[{d}:{d+15}], v[{buf}:{buf+3}], {st['B'](kap)}, {c}")
                else:
                    e(f"v_mfma_f32_32x32x16_bf16 v[{d}:{d+15}], v[{buf}:{buf+3}], {B}, {c}")
                if t == 0:
                    while nxt_read < len(ksteps):
                        tsi, tkl = ksteps[nxt_read]
                        tdist = 4 if stages[tsi]['kind'] == 'g3' else 2
                        if nxt_read - n > tdist: break
                        if tsi > si and slot_i <= 5: break
                        if tsi > si + 1: break
                        a_reads(nxt_read); nxt_read += 1
                if extra_slot: extra_slot(si, slot_i, kl, t)
                if slot_i == 5 and si + 1 < NS:
                    S_.wait_vm(dma_tok[si + 1])
                    e("s_barrier")
                if slot_i >= 6 and dmas:
                    dmas.pop(0)()
                budget += per_slot
                while queue and budget >= queue[0][1]:
                    txt, cost, k = queue.pop(0)
                    budget -= cost
                    if k == 'v': e(txt)
                    elif k == 'lg': queue_tok['lg'] = S_.lg(txt)
                    elif k == 'vm': queue_tok['vm'] = S_.vm(txt)
                    elif k == 'fn': txt()
                slot_i += 1
        assert not dmas
    queue_tok = {}
    def flush(queue):
        while queue:
            txt, cost, k = queue.pop(0)
            if k == 'v': e(txt)
            elif k == 'lg': queue_tok['lg'] = S_.lg(txt)
            elif k == 'vm': queue_tok['vm'] = S_.vm(txt)
            elif k == 'fn': txt()
    for g in range(9):
        S_.mark(f"G1_{g}")
        q_ = [("s_nop 0", 1.0, 'v')] * 0
        pre = [(f"s_add_u32 s{S_ACTG}, s{S_ACTG}, 8192", 1, 'v'), (f"s_and_b32 s{S_ACTG}, s{S_ACTG}, 0xffff", 1, 'v'),
               (f"v_add_u32 v{V_ACTW}, s{S_ACTG}, v{V_ACTB}", 1, 'v')]
        queue = [("", 6.0, 'fn')]
        queue[0] = (lambda: None, 7.0, 'fn')
        queue += pre + geglu_stream(1 - (g & 1))
        tot = sum(c for _, c, _ in queue)
        per = tot / 70.0
        pend = []
        def extra_last(si, slot_i, kl, t):
            st = stages[si]; kap = 6 * st['q'] + kl
            if pend:
                beta = pend.pop(0)
                S_.lg(f"ds_read_b128 {breg(beta)}, v{V_ACTR} offset:{beta*1024}")
            if kap <= 27:
                pend.append(2 * kap + t)
        for q in range(6):
            run_stage(6 * g + q, queue, per, extra_last if g == 8 else None)
        flush(queue)
    for bg in range(4):
        S_.mark(f"G2_{bg}")
        if bg == 0:
            pre = [(f"v_mov_b32 v{V_ACTW}, v{V_ACTB}", 1, 'v')]
            queue = [(lambda: None, 7.0, 'fn')] + pre + geglu_stream(0)
            tot = sum(c for _, c, _ in queue)
            per = tot / 50.0
            def extra0(si, slot_i, kl, t):
                q = stages[si]['q']
                if q == 1 and slot_i < 8:
                    beta = 56 + slot_i
                    S_.lg(f"ds_read_b128 {breg(beta)}, v{V_ACTR} offset:{beta*1024}")
                if q == 4 and slot_i == 4:
                    assert not queue
                    S_.wait_lg(queue_tok['lg'])
                if q == 4 and 6 <= slot_i < 10 or (q == 4 and False):
                    for tt in range(2):
                        beta = 64 + 2 * (slot_i - 6) + tt
                        S_.lg(f"ds_read_b128 {breg(beta)}, v{V_ACTR} offset:{(beta-64)*1024}")
            for q in range(6):
                run_stage(54 + q, queue, per, extra0)
            flush(queue)
        else:
            p_prev = 1 - ((bg - 1) & 1)
            queue = [(lambda: None, 7.0, 'fn')] + epi_stream(p_prev, 2, S_PST) + [(f"s_add_u32 s{S_PST}, s{S_PST}, {4*4096}", 1, 'v')]
            tot = sum(c for _, c, _ in queue)
            per = tot / 40.0
            for q in range(6):
                run_stage(54 + 6 * bg + q, queue, per)
            flush(queue)
    S_.mark("G3")
    for q in range(3): stages[78 + q]['B'] = lambda kap: f"@B{kap}@"
    queue = [(lambda: None, 7.0, 'fn')] + epi_stream(0, 2, S_PST)
    tot = sum(c for _, c, _ in queue)
    per = tot / 30.0
    for q in range(3):
        run_stage(78 + q, queue, per)
    flush(queue)
    e("s_nop 7"); e("s_nop 3")
    flush(epi_stream(1, 1, 51))
    S_.mark("END")
    segs = {}; cur = None
    for l in S_.out:
        if l.startswith(";@@"):
            cur = l[3:]; segs[cur] = []
        else: segs[cur].append(l)
    return segs

def merge_bodies(bodies):
    import re
    n = len(bodies[0])
    assert all(len(b) == n for b in bodies), [len(b) for b in bodies]
    out = []
    for ls in zip(*bodies):
        if all(l == ls[0] for l in ls):
            out.append(ls[0]); continue
        ms = [re.fullmatch(r"s_waitcnt (vmcnt|lgkmcnt)\((\d+)\)", l) for l in ls]
        assert all(ms) and len({m.group(1) for m in ms}) == 1, ls
        out.append(f"s_waitcnt {ms[0].group(1)}({min(int(m.group(2)) for m in ms)})")
    return out

def gen(a):
    segs = build()
    kernel_begin(a, NAME)
    a(f"""s_cmp_ge_u32 s2, {GRID}
s_cbranch_scc1 F_done
s_load_dwordx4 s[4:7], s[0:1], {KA['wg']}
s_load_dwordx2 s[24:25], s[0:1], {KA['wd']}
s_load_dwordx2 s[26:27], s[0:1], {KA['ws']}
v_lshrrev_b32 v19, 6, v0
v_and_b32 v1, 63, v0
s_and_b32 s28, s2, 7              ; j
s_lshr_b32 s29, s2, 3             ; mt
v_readfirstlane_b32 s30, v19      ; w
s_and_b32 s31, s30, 1             ; m = w&1
s_lshr_b32 s32, s30, 1            ; w>>1
s_mul_i32 s{S_OFF}, s32, {48*9216}
s_mul_i32 s33, s28, 1152
s_add_u32 s{S_OFF}, s{S_OFF}, s33
s_mul_i32 s{S_WB1}, s31, 12288
s_mul_i32 s34, s32, 6144
s_add_u32 s{S_WB1}, s{S_WB1}, s34
s_mul_i32 s{S_WB2}, s30, 6144
s_mul_i32 s35, s28, 576
s_mul_i32 s36, s30, 24
s_add_u32 s36, s36, s35
s_mul_i32 s{S_OFF2}, s36, 1152
s_mul_i32 s36, s30, 48
s_add_u32 s36, s36, s35
s_mul_i32 s47, s36, 1152
s_mov_b32 s{S_ACTG}, {6*8192}
s_lshl_b32 s48, s30, 10
s_mul_i32 s49, s29, {72*1024}
s_add_u32 s49, s49, s48
s_mul_i32 s36, s28, {ACT_BYTES}
s_mul_i32 s37, s29, {18*4096}
s_add_u32 s36, s36, s37
s_lshl_b32 s37, s30, 12
s_add_u32 s{S_PST}, s36, s37
s_lshl_b32 s37, s32, 12
s_add_u32 s51, s36, s37
s_lshl_b32 s37, s31, 11
s_add_u32 s51, s51, s37
s_add_u32 s51, s51, {16*4096}
v_lshrrev_b32 v20, 3, v1
v_mul_u32_u24 v20, 9216, v20
v_bfe_u32 v21, v1, 4, 1
s_lshl_b32 s37, s31, 1
v_or_b32 v21, s37, v21
v_bfe_u32 v22, v1, 1, 2
v_xor_b32 v21, v21, v22
v_lshl_add_u32 v20, v21, 5, v20
v_and_b32 v22, 1, v1
v_lshl_add_u32 v20, v22, 4, v20""")
    for i in range(6):
        a(f"v_add_u32 v{V_DMA+i}, {i*73728 - (i%4)*1024}, v20")
    a(f"""; G2 DMA lane part v28
v_lshrrev_b32 v20, 4, v1
v_mul_u32_u24 v28, 1152, v20
v_bfe_u32 v21, v1, 2, 2
v_xor_b32 v21, v21, v20
v_lshl_add_u32 v28, v21, 6, v28
v_and_b32 v22, 3, v1
v_lshl_add_u32 v28, v22, 4, v28
v_lshrrev_b32 v20, 3, v1
v_mul_u32_u24 v29, 1152, v20
v_bfe_u32 v21, v1, 2, 1
v_bfe_u32 v23, v1, 4, 1
v_xor_b32 v21, v21, v23
v_lshl_add_u32 v29, v21, 6, v29
v_lshl_add_u32 v29, v22, 4, v29
v_add_u32 v29, 1024, v29
v_lshrrev_b32 v24, 5, v1
v_bfe_u32 v25, v1, 2, 2
v_lshrrev_b32 v26, 1, v25         ; (r>>1)&1
; A1
v_mul_u32_u24 v{V_A1}, 12288, v23
v_lshl_add_u32 v{V_A1}, v24, 10, v{V_A1}
v_lshl_add_u32 v{V_A1}, v25, 7, v{V_A1}
v_lshl_or_b32 v27, v23, 1, v26
v_xor_b32 v27, s30, v27
v_lshl_add_u32 v{V_A1}, v27, 5, v{V_A1}
v_lshl_add_u32 v{V_A1}, v22, 3, v{V_A1}
v_add_u32 v{V_A1+1}, {2*SLOT}, v{V_A1}
; A2
v_lshl_add_u32 v27, v24, 2, v25   ; 4hf + r
v_lshlrev_b32 v{V_A2}, 8, v27
v_xor_b32 v21, s30, v25
v_lshl_add_u32 v{V_A2}, v21, 6, v{V_A2}
v_lshl_add_u32 v{V_A2}, v23, 5, v{V_A2}
v_lshl_add_u32 v{V_A2}, v22, 3, v{V_A2}
v_add_u32 v{V_A2+1}, {2*SLOT}, v{V_A2}
; A3
v_lshlrev_b32 v{V_A3}, 7, v27
v_xor_b32 v21, s32, v26
v_lshl_add_u32 v{V_A3}, v21, 6, v{V_A3}
v_lshl_add_u32 v{V_A3}, v23, 5, v{V_A3}
v_lshl_add_u32 v{V_A3}, v22, 3, v{V_A3}
v_add_u32 v{V_A3+1}, {2*SLOT}, v{V_A3}
; misc
v_lshlrev_b32 v{V_ST}, 4, v1
v_add_u32 v{V_ACTR}, {ACT}, v{V_ST}
s_lshl_b32 s37, s30, 11
v_add_u32 v{V_ACTB}, s37, v{V_ACTR}
v_mov_b32 v{V_ACTW}, v{V_ACTB}
v_add_u32 v30, {3*SLOT}, v{V_ST}
v_mov_b32 v{V_C2}, {f32(C2)}
s_waitcnt lgkmcnt(0)
s_cmp_eq_u32 s31, 0
s_cselect_b32 s8, s4, s6
s_cselect_b32 s9, s5, s7
s_mov_b32 s10, {D*F*2}
s_mov_b32 s11, {SRD3:#x}""")
    srd(a, 12, 24, 25, D * F * 2)
    srd(a, 16, 26, 27, 8 * ACT_BYTES, WS_PART)
    srd(a, 20, 26, 27, ACT_BYTES, WS_H2F)
    for l in segs["PRO_DMA_H2F"]: a(l)
    body = merge_bodies([segs[f"G1_{k}"] + segs[f"G1_{k+1}"] for k in (0, 2, 4, 6)])
    a(f"s_mov_b32 s{S_LOOP}, 4")
    a(".p2align 6\nF_loop:")
    for l in body: a(l)
    a(f"s_sub_u32 s{S_LOOP}, s{S_LOOP}, 1\ns_cmp_lg_u32 s{S_LOOP}, 0\ns_cbranch_scc1 F_loop")
    for nm in ("G1_8", "G2_0", "G2_1", "G2_2", "G2_3"):
        a(f"; ---- {nm}")
        for l in segs[nm]: a(l)
    import re
    a("s_cmp_eq_u32 s31, 0\ns_cbranch_scc0 F_g3_odd")
    for tg in range(2):
        if tg == 1: a("F_g3_odd:")
        for l in segs["G3"]:
            a(re.sub(r"@B(\d+)@", lambda m: breg(2 * int(m.group(1)) + tg), l))
        a("s_endpgm")
    a("F_done:\ns_endpgm")
```

```python
from gen_common import *
NAME = "red_kernel"
GRID = 288
BLOCK = 256
LDS = 0
VGPR = 128
def gen(a):
    kernel_begin(a, NAME)
    a(f"""s_cmp_ge_u32 s2, {GRID}
s_cbranch_scc1 R_done
s_load_dwordx2 s[4:5], s[0:1], {KA['out']}
s_load_dwordx2 s[26:27], s[0:1], {KA['ws']}
v_lshrrev_b32 v2, 6, v0
v_and_b32 v1, 63, v0
s_nop 0
v_readfirstlane_b32 s28, v2
s_lshl_b32 s29, s2, 2
s_add_u32 s29, s29, s28
s_lshl_b32 s30, s29, 11           ; u*2048
v_lshlrev_b32 v3, 4, v1           ; lane*16
; decode: tg = u&1 ; mb = u>>1 ; mt = mb/18 ; b = mb%18
s_and_b32 s31, s29, 1
s_lshr_b32 s32, s29, 1
s_mul_hi_u32 s33, s32, {(2**32 + 17)//18}
s_mul_i32 s34, s33, 18
s_sub_u32 s34, s32, s34           ; b
s_waitcnt lgkmcnt(0)""")
    srd(a, 8, 26, 27, 8 * ACT_BYTES, WS_PART)
    srd(a, 12, 26, 27, ACT_BYTES, WS_X1F)
    srd(a, 16, 26, 27, 3456 * 4, WS_MOD)
    srd(a, 20, 4, 5, ACT_BYTES)
    a("s_mov_b32 s35, s30")
    for j in range(8):
        a(f"buffer_load_dwordx4 v[{16+8*j}:{19+8*j}], v3, s[8:11], s35 offen")
        a(f"buffer_load_dwordx4 v[{20+8*j}:{23+8*j}], v3, s[8:11], s35 offen offset:1024")
        if j < 7: a(f"s_add_u32 s35, s35, {ACT_BYTES}")
    a("""buffer_load_dwordx4 v[80:83], v3, s[12:15], s30 offen
buffer_load_dwordx4 v[84:87], v3, s[12:15], s30 offen offset:1024""")
    a(f"""v_lshrrev_b32 v4, 5, v1           ; hf
v_lshlrev_b32 v4, 4, v4
s_lshl_b32 s36, s34, 7
s_add_u32 s36, s36, {5*D*4}""")
    for q in range(4):
        a(f"buffer_load_dwordx4 v[{88+4*q}:{91+4*q}], v4, s[16:19], s36 offen offset:{32*q}")
    a(f"""s_lshl_b32 s37, s33, 6
s_lshl_b32 s38, s31, 5
s_add_u32 s37, s37, s38
v_and_b32 v5, 31, v1
v_add_u32 v5, s37, v5
s_movk_i32 s39, {ROWB}
v_mul_lo_u32 v5, v5, s39
s_lshl_b32 s40, s34, 6
v_add_u32 v5, s40, v5
v_add_u32 v5, v5, v4              ; + hf*16""")
    a("s_waitcnt vmcnt(20)")
    for i in range(8):
        a(f"v_lshlrev_b32 v{104+2*i}, 16, v{16+i}\nv_and_b32 v{105+2*i}, 0xffff0000, v{16+i}")
    for j in range(1, 8):
        a(f"s_waitcnt vmcnt({20-2*j})")
        for i in range(8):
            a(f"""v_lshlrev_b32 v6, 16, v{16+8*j+i}
v_and_b32 v7, 0xffff0000, v{16+8*j+i}
v_add_f32 v{104+2*i}, v{104+2*i}, v6
v_add_f32 v{105+2*i}, v{105+2*i}, v7""")
    a("s_waitcnt vmcnt(0)")
    for i in range(8):
        q = i >> 1; r = 2 * (i & 1)
        a(f"v_cvt_pk_bf16_f32 v{16+i}, v{104+2*i}, v{105+2*i}")
    for i in range(8):
        q = i >> 1; r = 2 * (i & 1)
        a(f"""v_lshlrev_b32 v6, 16, v{16+i}
v_and_b32 v7, 0xffff0000, v{16+i}
v_mul_f32 v6, v6, v{88+4*q+r}
v_mul_f32 v7, v7, v{88+4*q+r+1}
v_cvt_pk_bf16_f32 v8, v6, v7
v_lshlrev_b32 v6, 16, v8
v_and_b32 v7, 0xffff0000, v8
v_lshlrev_b32 v9, 16, v{80+i}
v_and_b32 v10, 0xffff0000, v{80+i}
v_add_f32 v6, v6, v9
v_add_f32 v7, v7, v10
v_cvt_pk_bf16_f32 v{24+i}, v6, v7""")
    a("""s_nop 1
v_permlane32_swap_b32 v24, v26
v_permlane32_swap_b32 v25, v27
v_permlane32_swap_b32 v28, v30
v_permlane32_swap_b32 v29, v31
s_nop 1
buffer_store_dwordx4 v[24:27], v5, s[20:23], 0 offen
buffer_store_dwordx4 v[28:31], v5, s[20:23], 0 offen offset:32
R_done:
s_endpgm""")
```

```python
import sys
sys.path.insert(0, "dev")
from gen_common import *
import gen_a1, gen_a2, gen_c, gen_r, gen_ffn
def build(path, mods):
    a = Asm()
    src = open("adaLN_cond__ssm_conv_h3__geglu_ffn__prompt.s.ref").read().split("\n")
    for l in src:
        if l.startswith("; Override") : break
        a.lines.append(l)
    for m in mods:
        a.lines.append(f"; @launch kernel={m.NAME} grid=({m.GRID},1,1) block=({m.BLOCK},1,1) lds={m.LDS}")
    a.lines.append('.amdgcn_target "amdgcn-amd-amdhsa--gfx950"')
    for m in mods: m.gen(a)
    for m in mods:
        kernel_desc(a, m.NAME, m.VGPR, 102, 256 if m.VGPR > 256 else None)
    open(path, "w").write(a.text())
if __name__ == "__main__":
    out = sys.argv[1] if len(sys.argv) > 1 else "adaLN_cond__ssm_conv_h3__geglu_ffn__prompt.s"
    build(out, [gen_a1, gen_a2, gen_c, gen_ffn, gen_r])
```

```python
import re, sys
SLOTS = [88, 89, 92, 93, 94, 96, 97, 98, 99]
def instrument(text, want):
    lines = text.split("\n")
    out = []; n = -1; started = False
    for l in lines:
        if re.fullmatch(r"mega_kernel:", l.strip()):
            out.append(l)
            out.append("  s_memrealtime vcc\n  s_waitcnt lgkmcnt(0)\n  s_mov_b32 s88, vcc_lo")
            for s in SLOTS[1:]: out.append(f"  s_mov_b32 s{s}, 0")
            started = True
            continue
        m = re.search(r"@PH(\d+)", l)
        if m and started:
            k = int(m.group(1))
            out.append(f"  s_waitcnt lgkmcnt(0)\n  s_memrealtime vcc\n  s_waitcnt lgkmcnt(0)\n  s_mov_b32 s{SLOTS[k]}, vcc_lo")
            continue
        if l.strip() == "s_endpgm" and started:
            out.append(f"""  s_mov_b64 exec, -1
  s_waitcnt vmcnt(0) lgkmcnt(0)
  s_memrealtime vcc
  s_load_dwordx2 s[4:5], s[0:1], 112
  s_waitcnt lgkmcnt(0)
  s_mov_b32 s99, vcc_lo
  s_add_u32 s8, s4, 0x5000000
  s_addc_u32 s9, s5, 0
  s_mov_b32 s10, 0x20000
  s_mov_b32 s11, 0x20000
  v_lshrrev_b32 v1, 6, v0
  v_lshlrev_b32 v1, 6, v1
  s_lshl_b32 s12, s2, 8
  v_add_u32 v1, s12, v1
  v_mov_b32 v4, s88
  v_mov_b32 v5, s89
  v_mov_b32 v6, s92
  v_mov_b32 v7, s93
  v_mov_b32 v8, s94
  v_mov_b32 v9, s96
  v_mov_b32 v10, s97
  v_mov_b32 v11, s98
  v_mov_b32 v12, s99
  v_and_b32 v13, 63, v0
  v_cmp_eq_u32 vcc, 0, v13
  s_and_saveexec_b64 s[14:15], vcc
  buffer_store_dwordx4 v[4:7], v1, s[8:11], 0 offen
  buffer_store_dwordx4 v[8:11], v1, s[8:11], 0 offen offset:16
  buffer_store_dword v12, v1, s[8:11], 0 offen offset:32
  s_endpgm""")
            continue
        out.append(l)
    return "\n".join(out)
if __name__ == "__main__":
    open(sys.argv[2], "w").write(instrument(open(sys.argv[1]).read(), None))
```

```python
import re, sys, phstamp
t = phstamp.instrument(open(sys.argv[1]).read(), None)
extra = """  s_load_dwordx2 s[16:17], s[0:1], 104
  s_waitcnt lgkmcnt(0)
  s_mov_b32 s18, 256
  s_mov_b32 s19, 0x20000
  s_sub_u32 s89, s89, s88
  s_sub_u32 s92, s92, s88
  s_sub_u32 s93, s93, s88
  s_sub_u32 s94, s94, s88
  s_sub_u32 s96, s96, s88
  s_sub_u32 s97, s97, s88
  s_sub_u32 s98, s98, s88
  s_sub_u32 s99, s99, s88
  v_mov_b32 v20, s89
  v_mov_b32 v21, s92
  v_mov_b32 v22, s93
  v_mov_b32 v23, s94
  v_mov_b32 v24, s96
  v_mov_b32 v25, s97
  v_mov_b32 v26, s98
  v_mov_b32 v27, s99
  s_cmp_eq_u32 s2, 0
  s_cselect_b32 s20, 4, 36
  s_cmp_eq_u32 s2, 0
  s_cselect_b32 s21, 1, 0
  s_cmp_eq_u32 s2, 200
  s_cselect_b32 s21, 1, s21
  s_and_b32 s21, s21, s101
  s_cmp_eq_u32 s101, 0
  s_cselect_b32 s22, 1, 0
  s_cmp_eq_u32 s2, 0
  s_cselect_b32 s21, 1, 0
  s_cmp_eq_u32 s2, 200
  s_cselect_b32 s21, 1, s21
  s_and_b32 s21, s21, s22
  s_cmp_eq_u32 s21, 0
  s_cbranch_scc1 DBG_skip
  v_mov_b32 v28, s20
  v_cmp_eq_u32 vcc, 0, v0
  s_and_saveexec_b64 s[24:25], vcc
  buffer_store_dwordx4 v[20:23], v28, s[16:19], 0 offen
  buffer_store_dwordx3 v[24:26], v28, s[16:19], 0 offen offset:16
  s_mov_b64 exec, s[24:25]
  s_cmp_eq_u32 s2, 0
  s_cbranch_scc0 DBG_skip
  s_and_saveexec_b64 s[24:25], vcc
  buffer_store_dword v27, v28, s[16:19], 0 offen offset:28
  s_mov_b64 exec, s[24:25]
DBG_skip:
"""
i = t.rindex("  s_add_u32 s8, s4, 0x5000000")
t = t[:i] + extra + "  s_endpgm\n" + t[t.index("  s_endpgm", i) + len("  s_endpgm"):]
open(sys.argv[2], "w").write(t)
```
